```python
import torch

def _softmax(x, axis=-1):
    return torch.softmax(x, dim=axis)

def _gelu(x):
    return torch.nn.functional.gelu(x, approximate='tanh')

def _silu(x):
    return torch.nn.functional.silu(x)

def _sigmoid(x):
    return torch.sigmoid(x)

def _layernorm(x, axis=-1, eps=1e-05):
    m = x.mean(dim=axis, keepdim=True)
    v = x.var(dim=axis, keepdim=True, unbiased=False)
    return (x - m) / torch.sqrt(v + eps)

def _scatter_add(tgt, idx, src, axis=0):
    return tgt.clone().index_add_(axis, idx, src)

def _segment_sum(src, seg, n):
    out = torch.zeros((n,) + src.shape[1:], dtype=src.dtype)
    return out.index_add_(0, seg, src)

def _pad(x, pw):
    flat = tuple((v for pair in reversed(pw) for v in pair))
    return torch.nn.functional.pad(x, flat)
kernel_name = 'adaLN_cond__mha_block_cached__swiglu_ffn__decode'

def setup_inputs():

    _w = lambda a: (lambda t: t.to(torch.bfloat16) if t.is_floating_point() else t)(torch.as_tensor(a))

    def _A_setup():
        B, Sq, D = (8, 1, 512)
        H, Sk, Dh = (32, 4096, 128)
        return {'x': _w((lambda *s: torch.randn(*s, dtype=torch.bfloat16) * 0.1)(B, Sq, D)), 'k_cache': _w((lambda *s: torch.randn(*s, dtype=torch.bfloat16) * 0.8)(B, H, Sk, Dh)), 'v_cache': _w((lambda *s: torch.randn(*s, dtype=torch.bfloat16) * 1.6)(B, H, Sk, Dh)), 'wq': _w((lambda *s: torch.randn(*s, dtype=torch.bfloat16) * 0.8)(D, H * Dh) * D ** (-0.5)), 'wo': _w((lambda *s: torch.randn(*s, dtype=torch.bfloat16) * 1.6)(H * Dh, D) * (H * Dh) ** (-0.5))}
    _A_in = _A_setup()

    def _B_setup():
        B, S, D, F = (8, 1, 512, 1376)
        return {'x': _w((lambda *s: torch.randn(*s, dtype=torch.bfloat16) * 0.1)(B, S, D)), 'w_gate': _w((lambda *s: torch.randn(*s, dtype=torch.bfloat16) * 0.1)(D, F)), 'w_up': _w((lambda *s: torch.randn(*s, dtype=torch.bfloat16) * 0.1)(D, F)), 'w_down': _w((lambda *s: torch.randn(*s, dtype=torch.bfloat16) * 0.1)(F, D))}
    _B_in = _B_setup()
    return {'A_x': _A_in['x'], 'A_k_cache': _A_in['k_cache'], 'A_v_cache': _A_in['v_cache'], 'A_wq': _A_in['wq'], 'A_wo': _A_in['wo'], 'B_x': _B_in['x'], 'B_w_gate': _B_in['w_gate'], 'B_w_up': _B_in['w_up'], 'B_w_down': _B_in['w_down'], 'c': _w((lambda *s: torch.randn(*s, dtype=torch.bfloat16) * 0.8)(8, 512) * 8.0), 'w_mod': _w((lambda *s: torch.randn(*s, dtype=torch.bfloat16) * 0.8)(512, 6 * 512) * 512 ** (-0.5) * 8.0)}

def reference(A_x, A_k_cache, A_v_cache, A_wq, A_wo, B_x, B_w_gate, B_w_up, B_w_down, c, w_mod):

    def _A_ref(x, k_cache, v_cache, wq, wo):
        B, Sq, D = x.shape
        H, Dh = (32, 128)
        q = (lambda x, *d: x.permute(*d))((x @ wq).reshape(B, Sq, H, Dh), 0, 2, 1, 3)
        scores = torch.einsum('bhqd,bhkd->bhqk', q, k_cache) * Dh ** (-0.5)
        p = _softmax(scores, axis=-1)
        o = torch.einsum('bhqk,bhkd->bhqd', p, v_cache)
        return (lambda x, *d: x.permute(*d))(o, 0, 2, 1, 3).reshape(B, Sq, H * Dh) @ wo

    def _B_ref(x, w_gate, w_up, w_down):
        g = _silu(x @ w_gate)
        u = x @ w_up
        return g * u @ w_down
    x = A_x
    mod = (_silu(c) @ w_mod).reshape(c.shape[0], 6, 1, -1)
    sa, ca, ga, sb, cb, gb = (mod[:, 0].clone(), mod[:, 1].clone(), mod[:, 2].clone(), mod[:, 3].clone(), mod[:, 4].clone(), mod[:, 5].clone())
    h = _layernorm(x, axis=-1) * (1 + ca) + sa
    x = x + ga * _A_ref(h, A_k_cache, A_v_cache, A_wq, A_wo)
    h = _layernorm(x, axis=-1) * (1 + cb) + sb
    x = x + gb * _B_ref(h, B_w_gate, B_w_up, B_w_down)
    return x
```

```python
import struct, sys

NAME = "adaLN_cond__mha_block_cached__swiglu_ffn__decode"

def f32(x):
    return "0x%08x" % struct.unpack("<I", struct.pack("<f", x))[0]

LOG2E = f32(1.4426950408889634)
NLOG2E = f32(-1.4426950408889634)
SCALE = f32(128 ** -0.5)
EPS = f32(1e-5)
INV512 = f32(1.0 / 512)

WS_MOD = 0x0
WS_X1 = 0x10000
WS_FLAG1 = 0x18000
WS_FP = 0x20000
WS_DBG = 0x200000
L_SC = 0
L_MODP = 16384
L_QP = 24576
L_Q = 26624
L_CNT = 26880
L_OP = 27136
L_ML = 29184
L_XP = 29696
L_H2 = 33792
H2S = 1040
L_ACT = 42240
L_X1S = 43008
L_SHUF = 65536
LDS_BYTES = 131072

NFFN = 43
FFN0 = 96


class G:
    def __init__(self):
        self.o = []
        self.nlab = 0

    def A(self, s):
        self.o.append("  " + s)

    def L(self, s):
        self.o.append(s + ":")

    def C(self, s):
        self.o.append("  ; " + s)

    def lab(self, p):
        self.nlab += 1
        return f"L_{p}{self.nlab}"


def vr(r, n=1):
    return f"v{r}" if n == 1 else f"v[{r}:{r+n-1}]"


def gen(INF=5, LAG=8, C=40, dbg=0, HP=3):
    g = G()
    A, L, Cm = g.A, g.L, g.C
    K = NAME + "_kernel"
    hdr = [
        f"; fused adaLN + cached-MHA decode + SwiGLU FFN, single persistent launch (generated by gen.py)",
        f"; @launch grid=(256,1,1) block=(512,1,1) lds={LDS_BYTES}",
        '.amdgcn_target "amdgcn-amd-amdhsa--gfx950"',
        ".text",
        f".globl {K}",
        ".p2align 8",
        f".type {K},@function",
        f"{K}:",
    ]

    def bf16r(d, s):
        A(f"v_cvt_pk_bf16_f32 v{d}, v{s}, v{s}")
        A(f"v_and_b32 v{d}, 0xffff0000, v{d}")

    def set_exec(lo, hi=0):
        if (lo, hi) == (-1, -1):
            A("s_mov_b64 exec, -1")
        elif hi == 0 and 0 <= lo <= 64:
            A(f"s_mov_b64 exec, {lo}")
        else:
            A(f"s_mov_b32 exec_lo, {lo if lo < 0 else hex(lo)}")
            A(f"s_mov_b32 exec_hi, {hi if hi < 0 else hex(hi)}")

    def wave_reduce(regs, op, sdst):
        n = len(regs)
        pad = max(0, 2 - (n - 1))
        def nop():
            if pad:
                A(f"s_nop {pad-1}")
        A("s_nop 1")
        for sh in (8, 4, 2, 1):
            for r in regs:
                A(f"{op}_dpp v{r}, v{r}, v{r} row_ror:{sh} row_mask:0xf bank_mask:0xf")
            nop()
        for r in regs:
            A(f"{op}_dpp v{r}, v{r}, v{r} row_bcast:15 row_mask:0xa bank_mask:0xf")
        nop()
        for r in regs:
            A(f"{op}_dpp v{r}, v{r}, v{r} row_bcast:31 row_mask:0xc bank_mask:0xf")
        A("s_nop 0")
        for r, s in zip(regs, sdst):
            A(f"v_readlane_b32 s{s}, v{r}, 63")
        A("s_nop 1")

    def stamp(i):
        if dbg >= 2:
            A(f"s_memrealtime s[{76+2*i}:{77+2*i}]")
            A("s_waitcnt lgkmcnt(0)")

    def dump_stamps(t):
        if dbg >= 2:
            A("s_lshl_b32 s40, s2, 3")
            A("s_add_u32 s40, s40, s3")
            A("s_lshl_b32 s40, s40, 6")
            A(f"s_add_u32 s40, s40, {WS_DBG + 0x80000}")
            A(f"v_mov_b32 v{t}, s40")
            A("s_mov_b64 exec, 1")
            for i in range(10):
                A(f"v_mov_b32 v{t+1+i}, s{76+2*i}")
                A(f"global_store_dword v{t}, v{t+1+i}, s[30:31] offset:{4*i}")
            A("s_mov_b64 exec, -1")

    def make_masks(M, vi, t):
        A(f"v_mov_b32 v{t}, 0xffff")
        A(f"v_mov_b32 v{t+1}, 0xffff0000")
        for j in range(4):
            A(f"v_cmp_eq_u32 vcc, {2*j}, v{vi}")
            A(f"v_cmp_eq_u32 s[40:41], {2*j+1}, v{vi}")
            A("s_nop 1")
            A(f"v_cndmask_b32 v{M+j}, 0, v{t}, vcc")
            A(f"v_cndmask_b32 v{M+j}, v{M+j}, v{t+1}, s[40:41]")

    def ands(Areg, P, M, n):
        for j in range(4):
            A(f"v_and_b32_dpp v{Areg+j}, v{P}, v{M+j} row_newbcast:{n} row_mask:0xf bank_mask:0xf")

    def gemv_vtype(D, W, nsteps, Ps, M, Aset):
        ands(Aset, Ps[0], M, 0)
        for n in range(nsteps):
            if n + 1 < nsteps:
                ands(Aset + 4 * ((n + 1) & 1), Ps[(n + 1) >> 4], M, (n + 1) & 15)
            else:
                A("s_nop 1")
            a = Aset + 4 * (n & 1)
            c = "0" if n == 0 else vr(D, 4)
            A(f"v_mfma_f32_16x16x32_bf16 {vr(D,4)}, {vr(a,4)}, {vr(W+4*n,4)}, {c}")
        A("s_nop 7")
        A("s_nop 1")

    def lds_arrive(t, off):
        A("s_waitcnt lgkmcnt(0)")
        A(f"v_mov_b32 v{t}, {L_CNT+off}")
        A(f"v_mov_b32 v{t+1}, 1")
        A("s_mov_b64 exec, 1")
        A(f"ds_add_u32 v{t}, v{t+1}")
        A("s_mov_b64 exec, -1")

    def lds_wait(t, off, n):
        lb = g.lab("lw")
        dn = g.lab("lwd")
        A(f"v_mov_b32 v{t}, {L_CNT+off}")
        A("s_mov_b32 s71, 0x200000")
        L(lb)
        A(f"ds_read_b32 v{t+1}, v{t}")
        A("s_sub_u32 s71, s71, 1")
        A(f"s_cbranch_scc1 {dn}")
        A("s_waitcnt lgkmcnt(0)")
        A(f"v_readfirstlane_b32 s40, v{t+1}")
        A("s_nop 0")
        A(f"s_cmp_lt_u32 s40, {n}")
        A(f"s_cbranch_scc1 {lb}")
        L(dn)
        A("s_waitcnt lgkmcnt(0)")

    def poll(vaddr, sbase, t, vexp, width=1, sleep=True):
        lb = g.lab("poll")
        dn = g.lab("polld")
        A("s_mov_b32 s71, 0x80000")
        L(lb)
        if width == 1:
            A(f"global_load_dword v{t}, v{vaddr}, {sbase} sc1")
            A("s_waitcnt vmcnt(0)")
            A(f"v_cmp_ne_u32 vcc, v{t}, v{vexp}")
        else:
            A(f"global_load_dwordx4 {vr(t,4)}, v{vaddr}, {sbase} sc1")
            A("s_waitcnt vmcnt(0)")
            A(f"v_and_b32 v{t}, v{t}, v{t+1}")
            A(f"v_and_b32 v{t+2}, v{t+2}, v{t+3}")
            A(f"v_and_b32 v{t}, v{t}, v{t+2}")
            A(f"v_cmp_ne_u32 vcc, v{t}, v{vexp}")
        A("s_sub_u32 s71, s71, 1")
        A(f"s_cbranch_scc1 {dn}")
        A("s_cmp_eq_u64 vcc, 0")
        A(f"s_cbranch_scc1 {dn}")
        if sleep:
            A("s_sleep 1")
        A(f"s_branch {lb}")
        L(dn)

    def outproj(half, WO, M, Aset, P, D, vg, vi, vl, t):
        Cm("out projection: o rows 64*half + 4i + g")
        A(f"v_lshlrev_b32 v{t}, 4, v{vi}")
        A(f"v_lshl_add_u32 v{t}, v{vg}, 2, v{t}")
        A(f"v_mov_b32 v{t+1}, {L_ML}")
        A(f"ds_read_b128 {vr(t+4,4)}, v{t+1}")
        A(f"ds_read_b128 {vr(t+8,4)}, v{t+1} offset:16")
        for w in range(4):
            A(f"ds_read_b32 v{t+12+w}, v{t} offset:{L_OP + w*512 + half*256}")
        A("s_waitcnt lgkmcnt(4)")
        A(f"v_max3_f32 v{t+2}, v{t+4}, v{t+5}, v{t+6}")
        A(f"v_max_f32 v{t+2}, v{t+2}, v{t+7}")
        for w in range(4):
            A(f"v_sub_f32 v{t+4+w}, v{t+4+w}, v{t+2}")
        for w in range(4):
            A(f"v_exp_f32 v{t+4+w}, v{t+4+w}")
        A("s_nop 0")
        A(f"v_mul_f32 v{t+3}, v{t+4}, v{t+8}")
        for w in range(1, 4):
            A(f"v_fmac_f32 v{t+3}, v{t+4+w}, v{t+8+w}")
        A(f"v_rcp_f32 v{t+3}, v{t+3}")
        A("s_waitcnt lgkmcnt(0)")
        A(f"v_mul_f32 v{t+2}, v{t+4}, v{t+12}")
        for w in range(1, 4):
            A(f"v_fmac_f32 v{t+2}, v{t+4+w}, v{t+12+w}")
        A(f"v_mul_f32 v{t+2}, v{t+2}, v{t+3}")
        A(f"v_cvt_pk_bf16_f32 v{P}, v{t+2}, v{t+2}")
        if dbg:
            A(f"s_lshl_b32 s40, s35, 9")
            A(f"v_add_u32 v{t+1}, s40, v{t}")
            A(f"v_add_u32 v{t+1}, {WS_DBG + 0x10000 + half*256}, v{t+1}")
            A(f"global_store_dword v{t+1}, v{P}, s[30:31]")
        A("s_waitcnt vmcnt(0)")
        A("s_nop 0")
        gemv_vtype(D, WO, 16, [P], M, Aset)
        A(f"v_lshlrev_b32 v{t}, 5, v{vi}")
        A(f"v_lshl_add_u32 v{t}, v{vg}, 4, v{t}")
        A(f"s_lshl_b32 s40, s36, 9")
        A(f"v_add_u32 v{t}, s40, v{t}")
        set_exec(-1, 0)
        A(f"ds_write_b128 v{t}, {vr(D,4)} offset:{L_XP + half*2048}")
        A("s_mov_b64 exec, -1")
        A("s_waitcnt lgkmcnt(0)")
        A("s_barrier")
        A(f"v_lshlrev_b32 v{t}, 2, v0")
        A(f"ds_read_b32 v{t+1}, v{t} offset:{L_XP}")
        A(f"ds_read_b32 v{t+2}, v{t} offset:{L_XP+2048}")
        A(f"s_lshl_b32 s40, s34, 11")
        A(f"s_add_u32 s40, s40, {WS_X1}")
        A(f"v_add_u32 v{t}, s40, v{t}")
        A("s_waitcnt lgkmcnt(0)")
        A(f"v_add_f32 v{t+1}, v{t+1}, v{t+2}")
        A(f"global_atomic_add_f32 v{t}, v{t+1}, s[30:31] sc1")
        A("s_waitcnt vmcnt(0)")
        A("s_barrier")

    A("s_cmp_ge_u32 s2, 256")
    A("s_cbranch_scc1 L_end")
    A("s_load_dwordx16 s[4:19], s[0:1], 0")
    A("s_load_dwordx8 s[20:27], s[0:1], 64")
    A("s_load_dwordx4 s[28:31], s[0:1], 96")
    A("v_lshrrev_b32 v1, 6, v0")
    A("s_and_b32 s33, s2, 7")
    A("v_readfirstlane_b32 s3, v1")
    A("s_lshl_b32 s33, s33, 2")
    A("s_lshr_b32 s32, s2, 3")
    A("s_and_b32 s32, s32, 3")
    A("s_add_u32 s33, s33, s32")
    A("s_lshr_b32 s34, s2, 5")
    A("s_lshl_b32 s35, s34, 5")
    A("s_add_u32 s35, s35, s33")
    A("v_and_b32 v1, 63, v0")
    A("v_lshrrev_b32 v2, 4, v1")
    A("v_and_b32 v3, 15, v1")
    A("s_and_b32 s36, s3, 3")
    A("s_cmp_ge_u32 s3, 4")
    A("s_cbranch_scc1 L_helper")

    vKo, vVo, vSA, vMX, vLS, vWo = 4, 5, 6, 7, 8, 9
    vT = 10
    B = 12
    D = 28
    O = 28
    TB = 44
    SL0 = 48
    NSLOT = 48
    M, AS, P, Pn, Sn, vNM = 240, 244, 252, 253, 254, 255
    assert C <= NSLOT and LAG >= INF
    def slot(s):
        return SL0 + 4 * s
    Cm("stream wave: offsets")
    A("v_lshrrev_b32 v10, 2, v3")
    A("v_and_b32 v11, 3, v3")
    A(f"v_lshlrev_b32 v{vKo}, 8, v10")
    A(f"v_lshl_add_u32 v{vKo}, v2, 6, v{vKo}")
    A(f"v_lshl_add_u32 v{vKo}, v11, 4, v{vKo}")
    A("s_lshl_b32 s37, s3, 10")
    A(f"v_add_u32 v{vKo}, s37, v{vKo}")
    A(f"v_lshlrev_b32 v{vVo}, 4, v1")
    A(f"v_add_u32 v{vVo}, s37, v{vVo}")
    A("s_lshl_b32 s38, s35, 20")
    A("s_lshr_b32 s39, s35, 12")
    A("s_mov_b32 s46, 0x100000")
    A("s_mov_b32 s47, 0x20000")
    A("s_mov_b32 s50, 0x100000")
    A("s_mov_b32 s51, 0x20000")
    A("s_mov_b32 s52, 0")
    A("s_mov_b32 s53, 0")
    A("s_waitcnt lgkmcnt(0)")
    A("s_add_u32 s44, s6, s38")
    A("s_addc_u32 s45, s7, s39")

    def issueK(s, wait=INF - 1):
        if wait is not None:
            A(f"s_waitcnt vmcnt({wait})")
        A(f"buffer_load_dwordx4 {vr(slot(s),4)}, v{vKo}, s[44:47], s52 offen nt")
        A("s_add_u32 s52, s52, 4096")

    def issueV(s, wait=INF - 1):
        if wait is not None:
            A(f"s_waitcnt vmcnt({wait})")
        A(f"buffer_load_dwordx4 {vr(slot(s),4)}, v{vVo}, s[48:51], s53 offen nt")
        A("s_add_u32 s53, s53, 4096")

    GC = 4
    K0 = 16 * GC
    nissue_cu = K0 + LAG - C
    assert 0 <= nissue_cu <= K0
    slot_of = {}
    for k in range(C):
        slot_of[k] = k
    for k in range(INF):
        issueK(k, wait=None)
    stamp(0)
    A("s_add_u32 s48, s8, s38")
    A("s_addc_u32 s49, s9, s39")
    A(f"v_lshlrev_b32 v{vSA}, 2, v1")
    A("s_lshl_b32 s37, s3, 12")
    A(f"v_add_u32 v{vSA}, s37, v{vSA}")
    A(f"v_mov_b32 v{vMX}, 0xff800000")
    A(f"v_mov_b32 v{vLS}, 0")
    WOS = slot(16)
    A("s_mov_b32 s64, s12")
    A("s_mov_b32 s65, s13")
    A("s_mov_b32 s66, 0x400000")
    A("s_mov_b32 s67, 0x20000")
    A(f"v_lshlrev_b32 v{vWo}, 10, v2")
    A(f"v_lshl_add_u32 v{vWo}, v3, 4, v{vWo}")
    A("s_lshl_b32 s63, s33, 17")
    A("s_lshl_b32 s40, s36, 8")
    A("s_add_u32 s63, s63, s40")
    A(f"s_mov_b32 s70, {LOG2E}")
    make_masks(M, 3, vT)
    A("v_and_b32 v11, 3, v3")
    A("v_cmp_eq_u32 s[54:55], 0, v11")
    A("v_cmp_eq_u32 s[56:57], 1, v11")
    A("v_cmp_eq_u32 s[58:59], 2, v11")
    A("v_cmp_eq_u32 s[60:61], 3, v11")
    A("v_lshrrev_b32 v10, 2, v3")
    A("v_lshl_add_u32 v10, v2, 2, v10")
    A("v_lshlrev_b32 v10, 4, v10")
    A("s_barrier")
    for k in range(INF, C):
        issueK(k)
    stamp(1)
    A("s_barrier")
    stamp(2)
    Cm("B operands from q")
    A(f"ds_read_b128 {vr(D,4)}, v10 offset:{L_Q}")
    A("s_waitcnt lgkmcnt(0)")
    for t in range(4):
        for r in range(4):
            A(f"v_cndmask_b32 v{B+4*t+r}, 0, v{D+r}, s[{54+2*t}:{55+2*t}]")
    A("s_nop 1")

    def red_quad(u):
        for b in range(4):
            n = 4 * ((u - b) % 4)
            ctl = "quad_perm:[0,1,2,3]" if n == 0 else f"row_ror:{n}"
            A(f"v_mov_b32_dpp v{TB+b}, v{D+4*u+b} {ctl} row_mask:0xf bank_mask:{1<<u:#x}")

    def fin_scores():
        A(f"v_add_f32 v{vT}, v{TB}, v{TB+1}")
        A(f"v_add_f32 v{vT+1}, v{TB+2}, v{TB+3}")
        A(f"v_add_f32 v{vT}, v{vT}, v{vT+1}")
        bf16r(vT, vT)
        A(f"v_mul_f32 v{vT}, {SCALE}, v{vT}")
        bf16r(vT, vT)
        A(f"v_max_f32 v{vMX}, v{vMX}, v{vT}")
        A(f"ds_write_b32 v{vSA}, v{vT}")
        A(f"v_add_u32 v{vSA}, 256, v{vSA}")

    def k_group(slots, issues, prev=True):
        for n in range(16):
            u, t = n >> 2, n & 3
            if issues[n]:
                issues[n]()
            else:
                A("s_nop 0")
            c = "0" if t == 0 else vr(D + 4 * u, 4)
            A(f"v_mfma_f32_16x16x32_bf16 {vr(D+4*u,4)}, {vr(slot(slots[n]),4)}, {vr(B+4*t,4)}, {c}")
            if t == 3:
                if u == 0:
                    if prev:
                        red_quad(3)
                        fin_scores()
                else:
                    red_quad(u - 1)

    Cm("catch-up: consume prefetched K while issuing at a lower rate")
    nxt = C
    pos = [int((i + 0.5) * K0 / nissue_cu) for i in range(nissue_cu)] if nissue_cu else []
    assert len(set(pos)) == len(pos)
    busy = set(slot_of.values())
    for gi in range(GC):
        slots, issues = [], []
        for n in range(16):
            k = 16 * gi + n
            if k in pos:
                kk = nxt
                nxt += 1
                if kk >= K0:
                    s = kk % 16
                    assert s not in busy, (kk, s)
                else:
                    cand = [x for x in range(NSLOT) if x not in busy]
                    cand.sort(key=lambda x: (x < 16, -x))
                    s = cand[0]
                slot_of[kk] = s
                busy.add(s)
                issues.append((lambda s=s: issueK(s)))
            else:
                issues.append(None)
            assert k <= nxt - 1 - INF, (k, nxt)
            slots.append(slot_of[k])
            busy.discard(slot_of[k])
        k_group(slots, issues, prev=(gi > 0))
    assert nxt == K0 + LAG
    stamp(3)
    Cm("K group with the wo loads interleaved")
    def issueKW(n):
        issueK((n + LAG) % 16, wait=INF - 1 + min(n, INF))
        A(f"buffer_load_dwordx4 {vr(WOS+4*n,4)}, v{vWo}, s[64:67], s63 offen")
        A("s_add_u32 s63, s63, 4096")
    k_group(list(range(16)), [(lambda n=n: issueKW(n)) for n in range(16)])
    Cm("steady K loop")
    A(f"s_mov_b32 s62, {15 - GC - 1}")
    L("L_kloop")
    k_group(list(range(16)), [(lambda n=n: issueK((n + LAG) % 16)) for n in range(16)])
    A("s_sub_u32 s62, s62, 1")
    A("s_cmp_lg_u32 s62, 0")
    A("s_cbranch_scc1 L_kloop")
    Cm("last K group; V stream starts")
    k_group(list(range(16)),
            [(lambda n=n: issueK((n + LAG) % 16)) if n + LAG < 16 else (lambda n=n: issueV((n + LAG) % 16))
             for n in range(16)])
    A(f"v_subrev_u32 v{Sn}, 3840, v{vSA}")
    A(f"ds_read_b32 v{Sn}, v{Sn}")
    for r in range(4):
        A(f"v_mov_b32 v{O+r}, 0")
    red_quad(3)
    fin_scores()
    A(f"v_subrev_u32 v{vSA}, 4096, v{vSA}")
    wave_reduce([vMX], "v_max_f32", [68])
    A(f"v_mov_b32 v{vNM}, s70")
    A(f"v_mul_f32 v{vNM}, s68, v{vNM}")
    A(f"v_sub_f32 v{vNM}, 0, v{vNM}")
    stamp(4)

    def calcP(dst):
        A("s_waitcnt lgkmcnt(0)")
        A(f"v_fma_f32 v{vT}, v{Sn}, s70, v{vNM}")
        A(f"v_exp_f32 v{vT}, v{vT}")
        A("s_nop 0")
        A(f"v_cvt_pk_bf16_f32 v{dst}, v{vT}, v{vT}")
        A(f"v_add_f32 v{vLS}, v{vLS}, v{vT}")

    calcP(P)
    A("s_nop 0")
    ands(AS, P, M, 0)

    def v_group(issues, last=False):
        for n in range(16):
            if n == 15 and not last:
                A(f"v_mov_b32 v{P}, v{Pn}")
            if issues[n]:
                issues[n]()
            if n == 0 and not last:
                A(f"v_add_u32 v{vSA}, 256, v{vSA}")
                A(f"ds_read_b32 v{Sn}, v{vSA}")
            if n == 4 and not last:
                calcP(Pn)
            if n < 15 or not last:
                ands(AS + 4 * ((n + 1) & 1), P, M, (n + 1) & 15)
            else:
                A("s_nop 1")
            A(f"v_mfma_f32_16x16x32_bf16 {vr(O,4)}, {vr(AS+4*(n&1),4)}, {vr(slot(n),4)}, {vr(O,4)}")

    Cm("steady V loop")
    A("s_mov_b32 s62, 15")
    L("L_vloop")
    v_group([(lambda n=n: issueV((n + LAG) % 16)) for n in range(16)])
    A("s_sub_u32 s62, s62, 1")
    A("s_cmp_lg_u32 s62, 0")
    A("s_cbranch_scc1 L_vloop")
    Cm("last V group")
    def tailhook():
        wave_reduce([vLS], "v_add_f32", [69])
        A(f"v_lshlrev_b32 v{vT}, 5, v3")
        A(f"v_lshl_add_u32 v{vT}, v2, 4, v{vT}")
        A("s_lshl_b32 s40, s3, 9")
        A(f"v_add_u32 v{vT}, s40, v{vT}")
        A("s_lshl_b32 s40, s3, 2")
        A("v_mov_b32 v32, s40")
        A(f"v_sub_f32 v33, 0, v{vNM}")
        A("v_mov_b32 v34, s69")
        A("s_mov_b64 exec, 1")
        A(f"ds_write_b32 v32, v33 offset:{L_ML}")
        A(f"ds_write_b32 v32, v34 offset:{L_ML+16}")
        A("s_mov_b64 exec, -1")
    def tailstep(n):
        if n + LAG == 16:
            tailhook()
        A(f"s_waitcnt vmcnt({min(15-n, INF-1)})")
    v_group([(lambda n=n: issueV((n + LAG) % 16)) if n + LAG < 16 else
             (lambda n=n: tailstep(n)) for n in range(16)], last=True)
    set_exec(-1, 0)
    A("s_nop 5")
    A(f"ds_write_b128 v{vT}, {vr(O,4)} offset:{L_OP}")
    A("s_mov_b64 exec, -1")
    A("s_waitcnt lgkmcnt(0)")
    stamp(5)
    A("s_barrier")
    outproj(0, WOS, M, AS, P, TB, 2, 3, 1, slot(0))
    stamp(6)
    dump_stamps(slot(0))
    A("s_endpgm")

    L("L_helper")
    HM, HA, HP0, HD = 32, 36, 44, 48
    XR, XP, SAC = 52, 56, 58
    CX, GG, FR, MACC = 64, 72, 104, 112
    WQ = 128
    Cm("helper: init LDS counters (wave 4)")
    A("v_mov_b32 v4, 0")
    A(f"v_lshlrev_b32 v5, 2, v1")
    A(f"ds_write_b32 v5, v4 offset:{L_CNT}")
    A("s_waitcnt lgkmcnt(0)")
    A("s_barrier")
    stamp(0)
    A("s_lshl_b32 s37, s34, 10")
    A("v_lshlrev_b32 v4, 4, v1")
    A("v_add_u32 v4, s37, v4")
    A(f"global_load_dwordx4 {vr(XR,4)}, v4, s[4:5]")
    A("v_lshl_add_u32 v6, v3, 2, v2")
    A("s_lshl_b32 s38, s36, 7")
    A("v_add_u32 v6, s38, v6")
    A("v_lshlrev_b32 v6, 1, v6")
    A("v_add_u32 v7, s37, v6")
    A(f"global_load_ushort v{XP}, v7, s[4:5]")
    A(f"global_load_ushort v{XP+1}, v7, s[4:5] offset:128")
    A("s_cmp_ge_u32 s2, 96")
    A("s_cbranch_scc1 L_noprod1")
    Cm("producer: c (A layout) and w_mod gathers")
    A("v_and_b32 v8, 7, v3")
    A("v_lshlrev_b32 v8, 10, v8")
    A("v_lshrrev_b32 v9, 3, v3")
    A("v_lshl_add_u32 v8, v9, 7, v8")
    A("v_lshl_add_u32 v8, v2, 4, v8")
    A("s_lshl_b32 s38, s36, 8")
    A("v_add_u32 v8, s38, v8")
    A(f"global_load_dwordx4 {vr(CX,4)}, v8, s[22:23]")
    A(f"global_load_dwordx4 {vr(CX+4,4)}, v8, s[22:23] offset:64")
    A("s_mov_b32 s44, s24")
    A("s_mov_b32 s45, s25")
    A("s_mov_b32 s46, 0x300000")
    A("s_mov_b32 s47, 0x20000")
    A("v_mul_u32_u24 v9, 49152, v2")
    A("v_lshl_add_u32 v9, v3, 2, v9")
    A(f"s_mul_i32 s38, s36, {128*6144}")
    A("s_lshl_b32 s39, s2, 6")
    A("s_add_u32 s38, s38, s39")
    for kbl in range(4):
        for e in range(8):
            A(f"buffer_load_dword v{GG+8*kbl+e}, v9, s[44:47], s38 offen")
            if (kbl, e) != (3, 7):
                A(f"s_add_u32 s38, s38, {6144 if e < 7 else 6144*25}")
    L("L_noprod1")
    Cm("wq slice loads: rows 128hw+4n+g, cols h*128+8c")
    A("s_mov_b32 s48, s10")
    A("s_mov_b32 s49, s11")
    A("s_mov_b32 s50, 0x400000")
    A("s_mov_b32 s51, 0x20000")
    A("v_lshlrev_b32 v10, 13, v2")
    A("v_lshl_add_u32 v10, v3, 4, v10")
    A("s_lshl_b32 s38, s36, 20")
    A("s_lshl_b32 s39, s33, 8")
    A("s_add_u32 s38, s38, s39")
    for n in range(32):
        A(f"buffer_load_dwordx4 {vr(WQ+4*n,4)}, v10, s[48:51], s38 offen")
        if n < 31:
            A("s_add_u32 s38, s38, 32768")
    make_masks(HM, 3, 12)
    A("s_cmp_ge_u32 s2, 96")
    A("s_cbranch_scc1 L_noprod2")
    Cm("producer: silu(c)")
    A("s_waitcnt vmcnt(63)")
    A(f"v_mov_b32 v12, {NLOG2E}")
    for r in range(8):
        src = CX + r
        A(f"v_lshlrev_b32 v14, 16, v{src}")
        A(f"v_and_b32 v15, 0xffff0000, v{src}")
        A("v_mul_f32 v16, v12, v14")
        A("v_mul_f32 v17, v12, v15")
        A("v_exp_f32 v16, v16")
        A("v_exp_f32 v17, v17")
        A("s_nop 0")
        A("v_add_f32 v16, 1.0, v16")
        A("v_add_f32 v17, 1.0, v17")
        A("v_rcp_f32 v16, v16")
        A("v_rcp_f32 v17, v17")
        A("s_nop 0")
        A("v_mul_f32 v14, v14, v16")
        A("v_mul_f32 v15, v15, v17")
        A(f"v_cvt_pk_bf16_f32 v{src}, v14, v15")
    A("v_mov_b32 v12, 0x05040100")
    A("v_mov_b32 v13, 0x07060302")
    for kbl in range(4):
        A(f"s_waitcnt vmcnt({32 + 8*(3-kbl)})")
        fr = FR
        for p in range(4):
            A(f"v_perm_b32 v{fr+p}, v{GG+8*kbl+2*p+1}, v{GG+8*kbl+2*p}, v12")
        for p in range(4):
            A(f"v_perm_b32 v{fr+4+p}, v{GG+8*kbl+2*p+1}, v{GG+8*kbl+2*p}, v13")
        A("s_nop 1")
        hi, st = kbl >> 1, kbl & 1
        for par in range(2):
            acc = MACC + 8 * hi + 4 * par
            c = "0" if st == 0 else vr(acc, 4)
            A(f"v_mfma_f32_16x16x32_bf16 {vr(acc,4)}, {vr(CX+4*st,4)}, {vr(fr+4*par,4)}, {c}")
        A("s_nop 3")
    A("s_nop 7")
    A("v_cmp_gt_u32 vcc, 2, v2")
    A("s_nop 1")
    for par in range(2):
        for r in range(4):
            A(f"v_cndmask_b32 v{16+2*r+par}, v{MACC+8+4*par+r}, v{MACC+4*par+r}, vcc")
    A("v_lshrrev_b32 v12, 1, v2")
    A("s_lshl_b32 s38, s36, 1")
    A("v_add_u32 v12, s38, v12")
    A("v_lshlrev_b32 v12, 10, v12")
    A("v_and_b32 v13, 1, v2")
    A("v_lshl_add_u32 v12, v13, 9, v12")
    A("v_lshl_add_u32 v12, v3, 3, v12")
    for r in range(4):
        A(f"ds_write_b64 v12, {vr(16+2*r,2)} offset:{L_MODP + r*128}")
    lds_arrive(12, 0)
    A("s_cmp_lg_u32 s36, 0")
    A("s_cbranch_scc1 L_noprod2")
    Cm("helper 0 of a producer: zero its share of the accumulators/flags, sum partials, publish")
    A("s_cmp_ge_u32 s2, 32")
    A("s_cbranch_scc1 L_nozero")
    A("v_mov_b32 v16, 0")
    A("v_mov_b32 v17, 0")
    A("v_lshlrev_b32 v12, 3, v1")
    A("s_lshl_b32 s38, s2, 9")
    A(f"s_add_u32 s38, s38, {WS_X1}")
    A("v_add_u32 v12, s38, v12")
    A("global_store_dwordx2 v12, v[16:17], s[30:31] sc1")
    A("v_lshlrev_b32 v12, 2, v1")
    A("s_lshl_b32 s38, s2, 5")
    A(f"s_add_u32 s38, s38, {WS_FLAG1}")
    A("v_add_u32 v12, s38, v12")
    set_exec(0xff, 0)
    A("global_store_dword v12, v16, s[30:31] sc1")
    A("s_mov_b64 exec, -1")
    L("L_nozero")
    lds_wait(12, 0, 4)
    A("v_lshlrev_b32 v12, 4, v1")
    for p in range(8):
        A(f"ds_read_b128 {vr(GG+4*p,4)}, v12 offset:{L_MODP + p*1024}")
    for p in range(1, 8):
        A(f"s_waitcnt lgkmcnt({7-p})")
        for r in range(4):
            A(f"v_add_f32 v{GG+r}, v{GG+r}, v{GG+4*p+r}")
    A(f"v_cvt_pk_bf16_f32 v16, v{GG}, v{GG+1}")
    A(f"v_cvt_pk_bf16_f32 v17, v{GG+2}, v{GG+3}")
    A("v_lshrrev_b32 v12, 3, v1")
    A("v_mul_u32_u24 v12, 6144, v12")
    A("v_and_b32 v13, 7, v1")
    A("v_lshl_add_u32 v12, v13, 3, v12")
    A("s_lshl_b32 s38, s2, 6")
    A("v_add_u32 v12, s38, v12")
    A(f"global_store_dwordx2 v12, v[16:17], s[30:31] offset:{WS_MOD} sc1")
    A("s_waitcnt vmcnt(0)")
    A("v_mov_b32 v12, s2")
    A("v_mov_b32 v13, 1")
    A("s_mov_b64 exec, 1")
    A("global_store_byte v12, v13, s[28:29] sc1")
    A("s_mov_b64 exec, -1")
    L("L_noprod2")

    def ln_stats(xs, tsum, s0):
        n = len(xs)
        for i, x in enumerate(xs):
            t = tsum + i
            A(f"v_add_f32 v{t}, v{x}, v{x+1}")
            for e in range(2, 8):
                A(f"v_add_f32 v{t}, v{t}, v{x+e}")
        wave_reduce([tsum + i for i in range(n)], "v_add_f32", [s0 + i for i in range(n)])
        for i, x in enumerate(xs):
            m = tsum + n + i
            A(f"v_mov_b32 v{m}, {INV512}")
            A(f"v_mul_f32 v{m}, s{s0+i}, v{m}")
            t = tsum + i
            d = tsum + 2 * n
            A(f"v_sub_f32 v{d}, v{x}, v{m}")
            A(f"v_mul_f32 v{t}, v{d}, v{d}")
            for e in range(1, 8):
                A(f"v_sub_f32 v{d}, v{x+e}, v{m}")
                A(f"v_fmac_f32 v{t}, v{d}, v{d}")
        wave_reduce([tsum + i for i in range(n)], "v_add_f32", [s0 + i for i in range(n)])
        for i, x in enumerate(xs):
            m = tsum + n + i
            t = tsum + i
            bf16r(m, m)
            A(f"v_mov_b32 v{t}, {INV512}")
            A(f"v_mul_f32 v{t}, s{s0+i}, v{t}")
            bf16r(t, t)
            A(f"v_add_f32 v{t}, {EPS}, v{t}")
            bf16r(t, t)
            A(f"v_sqrt_f32 v{t}, v{t}")
            A("s_nop 0")
            bf16r(t, t)
            A(f"v_rcp_f32 v{t}, v{t}")
            A("s_nop 0")

    Cm("LayerNorm statistics of x[b]")
    A("s_waitcnt vmcnt(32)")
    for r in range(4):
        A(f"v_lshlrev_b32 v{12+2*r}, 16, v{XR+r}")
        A(f"v_and_b32 v{13+2*r}, 0xffff0000, v{XR+r}")
    ln_stats([12], 20, 40)
    for a in range(2):
        A(f"v_lshlrev_b32 v{XP+a}, 16, v{XP+a}")
        A(f"v_sub_f32 v{XP+a}, v{XP+a}, v21")
        bf16r(XP + a, XP + a)
        A(f"v_mul_f32 v{XP+a}, v{XP+a}, v20")
        bf16r(XP + a, XP + a)
    Cm("wait for sa/ca slices")
    A("v_and_b32 v12, 7, v1")
    A("v_lshlrev_b32 v12, 2, v12")
    A("v_mov_b32 v13, 0x01010101")
    poll(12, "s[28:29]", 14, 13)
    stamp(1)
    A("s_mul_i32 s38, s34, 6144")
    A("v_add_u32 v7, s38, v6")
    A(f"global_load_ushort v{SAC}, v7, s[30:31] offset:{WS_MOD} sc1")
    A(f"global_load_ushort v{SAC+1}, v7, s[30:31] offset:{WS_MOD+128} sc1")
    A(f"global_load_ushort v{SAC+2}, v7, s[30:31] offset:{WS_MOD+1024} sc1")
    A(f"global_load_ushort v{SAC+3}, v7, s[30:31] offset:{WS_MOD+1152} sc1")
    A("s_waitcnt vmcnt(0)")
    for a in range(2):
        A(f"v_lshlrev_b32 v{SAC+a}, 16, v{SAC+a}")
        A(f"v_lshlrev_b32 v{SAC+2+a}, 16, v{SAC+2+a}")
        A(f"v_add_f32 v{SAC+2+a}, 1.0, v{SAC+2+a}")
        bf16r(SAC + 2 + a, SAC + 2 + a)
        A(f"v_mul_f32 v{XP+a}, v{XP+a}, v{SAC+2+a}")
        bf16r(XP + a, XP + a)
        A(f"v_add_f32 v{XP+a}, v{XP+a}, v{SAC+a}")
        A(f"v_cvt_pk_bf16_f32 v{HP0+a}, v{XP+a}, v{XP+a}")
    A("s_nop 1")
    Cm("q projection")
    gemv_vtype(HD, WQ, 32, [HP0, HP0 + 1], HM, HA)
    A("v_lshlrev_b32 v12, 5, v3")
    A("v_lshl_add_u32 v12, v2, 4, v12")
    A("s_lshl_b32 s38, s36, 9")
    A("v_add_u32 v12, s38, v12")
    set_exec(-1, 0)
    A(f"ds_write_b128 v12, {vr(HD,4)} offset:{L_QP}")
    A("s_mov_b64 exec, -1")
    lds_arrive(12, 4)
    A("s_cmp_lg_u32 s36, 0")
    A("s_cbranch_scc1 L_qdone")
    lds_wait(12, 4, 4)
    A("v_and_b32 v12, 31, v1")
    A("v_lshlrev_b32 v12, 4, v12")
    for w in range(4):
        A(f"ds_read_b128 {vr(16+4*w,4)}, v12 offset:{L_QP + w*512}")
    for w in range(1, 4):
        A(f"s_waitcnt lgkmcnt({3-w})")
        for r in range(4):
            A(f"v_add_f32 v{16+r}, v{16+r}, v{16+4*w+r}")
    A("v_cvt_pk_bf16_f32 v14, v16, v17")
    A("v_cvt_pk_bf16_f32 v15, v18, v19")
    A("v_lshrrev_b32 v12, 1, v12")
    A(f"ds_write_b64 v12, v[14:15] offset:{L_Q}")
    if dbg:
        A("s_lshl_b32 s38, s35, 8")
        A("v_add_u32 v12, s38, v12")
        A(f"v_add_u32 v12, {WS_DBG}, v12")
        A("global_store_dwordx2 v12, v[14:15], s[30:31]")
    A("s_waitcnt lgkmcnt(0)")
    L("L_qdone")
    stamp(2)
    A("s_barrier")
    WO = 128
    Cm("helper: wo half 1 loads (rows 64+4n+g)")
    A("s_mov_b32 s48, s12")
    A("s_mov_b32 s49, s13")
    A("v_lshlrev_b32 v10, 10, v2")
    A("v_lshl_add_u32 v10, v3, 4, v10")
    A("s_lshl_b32 s38, s33, 17")
    A("s_lshl_b32 s39, s36, 8")
    A("s_add_u32 s38, s38, s39")
    A("s_add_u32 s38, s38, 65536")
    for n in range(16):
        A(f"s_waitcnt vmcnt({HP-1})")
        A(f"buffer_load_dwordx4 {vr(WO+4*n,4)}, v10, s[48:51], s38 offen")
        A("s_add_u32 s38, s38, 4096")
    A(f"s_sub_u32 s42, s2, {FFN0}")
    A(f"s_cmp_ge_u32 s42, {NFFN}")
    A("s_cbranch_scc1 L_noffn1")
    GU, DN, RAW, PRE, GB = 192, 64, 96, 96, 60
    Cm("FFN workgroup: gate/up raw loads + fragment build")
    A("v_cmp_gt_u32 vcc, 8, v3")
    A("v_mov_b32 v12, s18")
    A("v_mov_b32 v13, s19")
    A("v_mov_b32 v14, s16")
    A("v_mov_b32 v15, s17")
    A("v_cndmask_b32 v12, v12, v14, vcc")
    A("v_cndmask_b32 v13, v13, v15, vcc")
    A(f"v_mul_u32_u24 v14, {8*2752}, v2")
    A("v_and_b32 v15, 7, v3")
    A("v_lshl_add_u32 v14, v15, 3, v14")
    A(f"s_mul_i32 s38, s36, {128*2752}")
    A("s_lshl_b32 s39, s42, 6")
    A("s_add_u32 s38, s38, s39")
    A("v_add_u32 v14, s38, v14")
    A("v_mov_b32 v15, 0")
    A("v_lshl_add_u64 v[12:13], v[14:15], 0, v[12:13]")
    A("s_mov_b32 s52, 2752")
    A("s_mov_b32 s53, 0")
    A(f"s_mov_b32 s54, {2752*25}")
    A("s_mov_b32 s55, 0")
    A("v_mov_b32 v16, 0x05040100")
    A("v_mov_b32 v17, 0x07060302")
    A("v_lshlrev_b32 v18, 4, v1")
    A("s_lshl_b32 s38, s36, 12")
    A(f"s_add_u32 s38, s38, {L_SHUF}")
    A("v_add_u32 v18, s38, v18")
    for kbl in range(4):
        for e in range(8):
            A(f"s_waitcnt vmcnt({HP-1})")
            A(f"global_load_dwordx2 {vr(RAW+2*e,2)}, v[12:13], off")
            if (kbl, e) != (3, 7):
                A(f"v_lshl_add_u64 v[12:13], v[12:13], 0, {'s[52:53]' if e < 7 else 's[54:55]'}")
        A("s_waitcnt vmcnt(0)")
        for u in range(4):
            for p in range(4):
                A(f"v_perm_b32 v{RAW+16+4*u+p}, v{RAW+2*(2*p+1)+(u>>1)}, v{RAW+2*(2*p)+(u>>1)}, v{16+(u&1)}")
            A(f"ds_write_b128 v18, {vr(RAW+16+4*u,4)} offset:{u*16384 + kbl*1024}")
        A("s_waitcnt lgkmcnt(0)")
    lds_arrive(12, 8)
    Cm("down weights: rows f0+8s+e, cols 128hw+8j")
    A("v_lshlrev_b32 v12, 13, v2")
    A("v_lshl_add_u32 v12, v3, 4, v12")
    A("s_lshl_b32 s38, s42, 15")
    A("s_lshl_b32 s39, s36, 8")
    A("s_add_u32 s38, s38, s39")
    A("v_add_u32 v12, s38, v12")
    A("v_add_u32 v13, 4096, v12")
    for e in range(8):
        A(f"s_waitcnt vmcnt({HP-1})")
        A(f"global_load_dwordx4 {vr(RAW+4*e,4)}, v{12+(e>>2)}, s[20:21] offset:{(e&3)*1024}")
    A("s_waitcnt vmcnt(0)")
    for u in range(8):
        for p in range(4):
            A(f"v_perm_b32 v{DN+4*u+p}, v{RAW+4*(2*p+1)+(u>>1)}, v{RAW+4*(2*p)+(u>>1)}, v{16+(u&1)}")
    Cm("wait for the remaining mod slices, preload x/ga/sb/cb rows 2hw,2hw+1 and gb")
    A("v_and_b32 v12, 15, v1")
    A("v_lshlrev_b32 v12, 2, v12")
    A("v_add_u32 v12, 32, v12")
    A("v_mov_b32 v13, 0x01010101")
    poll(12, "s[28:29]", 14, 13)
    A("v_lshlrev_b32 v12, 4, v1")
    A("s_lshl_b32 s38, s36, 11")
    A("v_add_u32 v13, s38, v12")
    A(f"s_mul_i32 s38, s36, {2*6144}")
    A("v_add_u32 v14, s38, v12")
    A("v_add_u32 v15, 6144, v14")
    for rr in range(2):
        A(f"global_load_dwordx4 {vr(PRE+16*rr,4)}, v13, s[4:5] offset:{rr*1024}")
        A(f"global_load_dwordx4 {vr(PRE+16*rr+4,4)}, v{14+rr}, s[30:31] offset:{WS_MOD+2048} sc1")
        A(f"global_load_dwordx4 {vr(PRE+16*rr+8,4)}, v{14+rr}, s[30:31] offset:{WS_MOD+3072} sc1")
        A(f"v_add_u32 v{14+rr}, 4096, v{14+rr}")
        A(f"global_load_dwordx4 {vr(PRE+16*rr+12,4)}, v{14+rr}, s[30:31] offset:{WS_MOD} sc1")
    A("v_and_b32 v12, 1, v2")
    A(f"v_mul_u32_u24 v12, {4*6144}, v12")
    A("v_lshl_add_u32 v12, v3, 4, v12")
    A("s_lshr_b32 s38, s42, 3")
    A("s_and_b32 s38, s38, 3")
    A("s_lshl_b32 s38, s38, 8")
    A("s_and_b32 s39, s42, 7")
    A("s_lshl_b32 s39, s39, 1")
    A("s_add_u32 s43, s38, s39")
    A("s_add_u32 s38, s43, 5120")
    A("v_add_u32 v12, s38, v12")
    for r in range(4):
        A(f"global_load_ushort v{GB+r}, v12, s[30:31] offset:{WS_MOD} sc1")
        if r < 3:
            A("v_add_u32 v12, 6144, v12")
    lds_wait(12, 8, 4)
    A("v_lshlrev_b32 v12, 4, v1")
    A("s_lshl_b32 s38, s36, 14")
    A(f"s_add_u32 s38, s38, {L_SHUF}")
    A("v_add_u32 v12, s38, v12")
    for kb in range(16):
        A(f"ds_read_b128 {vr(GU+4*kb,4)}, v12 offset:{kb*1024}")
    A("s_waitcnt lgkmcnt(0)")
    L("L_noffn1")
    stamp(3)
    A("s_barrier")
    outproj(1, WO, HM, HA, HP0, HD, 2, 3, 1, 12)
    A("s_cmp_lg_u32 s36, 0")
    A("s_cbranch_scc1 L_noflag")
    A("s_lshl_b32 s38, s2, 2")
    A(f"s_add_u32 s38, s38, {WS_FLAG1}")
    A("v_mov_b32 v12, s38")
    A("v_mov_b32 v13, 1")
    A("s_mov_b64 exec, 1")
    A("global_store_dword v12, v13, s[30:31] sc1")
    A("s_mov_b64 exec, -1")
    L("L_noflag")
    stamp(4)
    A(f"s_cmp_ge_u32 s42, {NFFN}")
    A("s_cbranch_scc1 L_hend")
    Cm("FFN: wait for all attention workgroups")
    A("v_lshlrev_b32 v12, 4, v1")
    A(f"v_add_u32 v12, {WS_FLAG1}, v12")
    A("v_mov_b32 v13, 1")
    poll(12, "s[30:31]", 16, 13, width=4, sleep=False)
    stamp(5)
    X = 128
    A("v_lshlrev_b32 v12, 5, v1")
    A("s_lshl_b32 s38, s36, 12")
    A(f"s_add_u32 s38, s38, {WS_X1}")
    A("v_add_u32 v12, s38, v12")
    for rr in range(2):
        A(f"global_load_dwordx4 {vr(X+8*rr,4)}, v12, s[30:31] offset:{rr*2048} sc1")
        A(f"global_load_dwordx4 {vr(X+8*rr+4,4)}, v12, s[30:31] offset:{rr*2048+16} sc1")
    def unpack(src, e, d):
        if e & 1:
            A(f"v_and_b32 v{d}, 0xffff0000, v{src+(e>>1)}")
        else:
            A(f"v_lshlrev_b32 v{d}, 16, v{src+(e>>1)}")
    for rr in range(2):
        A(f"s_waitcnt vmcnt({2*(1-rr)})")
        for e in range(8):
            x = X + 8 * rr + e
            bf16r(x, x)
            unpack(PRE + 16 * rr + 4, e, 14)
            A(f"v_mul_f32 v{x}, v{x}, v14")
            bf16r(x, x)
            unpack(PRE + 16 * rr, e, 15)
            A(f"v_add_f32 v{x}, v{x}, v15")
            bf16r(x, x)
    A("v_lshlrev_b32 v12, 5, v1")
    A("s_lshl_b32 s38, s36, 12")
    A("v_add_u32 v12, s38, v12")
    for rr in range(2):
        A(f"ds_write_b128 v12, {vr(X+8*rr,4)} offset:{L_X1S + rr*2048}")
        A(f"ds_write_b128 v12, {vr(X+8*rr+4,4)} offset:{L_X1S + rr*2048 + 16}")
    ln_stats([X, X + 8], 20, 40)
    for rr in range(2):
        for e in range(8):
            x = X + 16 + 8 * rr + e
            A(f"v_sub_f32 v{x}, v{X+8*rr+e}, v{22+rr}")
            bf16r(x, x)
            A(f"v_mul_f32 v{x}, v{x}, v{20+rr}")
            bf16r(x, x)
            unpack(PRE + 16 * rr + 12, e, 14)
            A("v_add_f32 v14, 1.0, v14")
            bf16r(14, 14)
            A(f"v_mul_f32 v{x}, v{x}, v14")
            bf16r(x, x)
            unpack(PRE + 16 * rr + 8, e, 15)
            A(f"v_add_f32 v{x}, v{x}, v15")
        for p in range(4):
            A(f"v_cvt_pk_bf16_f32 v{X+32+4*rr+p}, v{X+16+8*rr+2*p}, v{X+16+8*rr+2*p+1}")
    A("v_lshlrev_b32 v12, 4, v1")
    A(f"s_mul_i32 s38, s36, {2*H2S}")
    A("v_add_u32 v12, s38, v12")
    for rr in range(2):
        A(f"ds_write_b128 v12, {vr(X+32+4*rr,4)} offset:{L_H2 + rr*H2S}")
    if dbg:
        A("v_lshlrev_b32 v12, 4, v1")
        A("s_lshl_b32 s38, s36, 11")
        A("v_add_u32 v12, s38, v12")
        A(f"v_add_u32 v12, {WS_DBG + 0x40000}, v12")
        for rr in range(2):
            A(f"global_store_dwordx4 v12, {vr(X+32+4*rr,4)}, s[30:31] offset:{rr*1024}")
    A("s_waitcnt lgkmcnt(0)")
    A("s_barrier")
    Cm("gate/up")
    stamp(6)
    A("v_and_b32 v12, 7, v3")
    A(f"v_mul_u32_u24 v12, {H2S}, v12")
    A("v_lshl_add_u32 v12, v2, 4, v12")
    for kb in range(16):
        A(f"ds_read_b128 {vr(X+4*kb,4)}, v12 offset:{L_H2 + kb*64}")
    for kb in range(16):
        A(f"s_waitcnt lgkmcnt({15-kb})")
        acc = 16 + 4 * (kb & 1)
        c = "0" if kb < 2 else vr(acc, 4)
        A(f"v_mfma_f32_16x16x32_bf16 {vr(acc,4)}, {vr(X+4*kb,4)}, {vr(GU+4*kb,4)}, {c}")
    A("s_nop 7")
    A("s_nop 1")
    for r in range(4):
        A(f"v_add_f32 v{16+r}, v{16+r}, v{20+r}")
        bf16r(16 + r, 16 + r)
    A(f"v_mov_b32 v12, {NLOG2E}")
    A("s_nop 0")
    for r in range(4):
        A(f"v_mov_b32_dpp v{20+r}, v{16+r} row_ror:8 row_mask:0xf bank_mask:0xf")
    for r in range(4):
        A(f"v_mul_f32 v{24+r}, v12, v{16+r}")
    for r in range(4):
        A(f"v_exp_f32 v{24+r}, v{24+r}")
    A("s_nop 0")
    for r in range(4):
        A(f"v_add_f32 v{24+r}, 1.0, v{24+r}")
    for r in range(4):
        A(f"v_rcp_f32 v{24+r}, v{24+r}")
    A("s_nop 0")
    for r in range(4):
        A(f"v_mul_f32 v{16+r}, v{16+r}, v{24+r}")
        bf16r(16 + r, 16 + r)
        A(f"v_mul_f32 v{16+r}, v{16+r}, v{20+r}")
        A(f"v_cvt_pk_bf16_f32 v{16+r}, v{16+r}, v{16+r}")
    A("v_mul_u32_u24 v12, 320, v2")
    A("v_lshl_add_u32 v12, v3, 3, v12")
    A("s_lshl_b32 s38, s36, 1")
    A("v_add_u32 v12, s38, v12")
    set_exec(0x00ff00ff, 0)
    for r in range(4):
        A(f"ds_write_b16 v12, v{16+r} offset:{L_ACT + r*80}")
    A("s_mov_b64 exec, -1")
    A("s_waitcnt lgkmcnt(0)")
    A("s_barrier")
    Cm("down")
    A("v_and_b32 v12, 7, v3")
    A("v_mul_u32_u24 v12, 80, v12")
    A("v_lshl_add_u32 v12, v2, 4, v12")
    A(f"ds_read_b128 v[16:19], v12 offset:{L_ACT}")
    A("v_lshlrev_b32 v12, 4, v1")
    A("s_lshl_b32 s38, s42, 14")
    A("s_lshl_b32 s39, s36, 12")
    A("s_add_u32 s38, s38, s39")
    A(f"s_add_u32 s38, s38, {WS_FP}")
    A("v_add_u32 v12, s38, v12")
    A("s_waitcnt lgkmcnt(0)")
    for u in range(8):
        A(f"v_mfma_f32_16x16x32_bf16 {vr(X+4*u,4)}, v[16:19], {vr(DN+4*u,4)}, 0")
    A("s_nop 2")
    set_exec(-1, 0)
    for u in range(8):
        A(f"global_store_dwordx4 v12, {vr(X+4*u,4)}, s[30:31] offset:{u*512} sc1")
        if u < 7:
            A("s_nop 0")
    A("s_mov_b64 exec, -1")
    A("s_waitcnt vmcnt(0)")
    A("s_barrier")
    stamp(7)
    A("s_cmp_lg_u32 s36, 0")
    A("s_cbranch_scc1 L_hend")
    A(f"v_mov_b32 v12, s2")
    A("v_mov_b32 v13, 1")
    A("s_mov_b64 exec, 1")
    A("global_store_byte v12, v13, s[28:29] sc1")
    A("s_mov_b64 exec, -1")
    A("s_cmp_ge_u32 s42, 32")
    A("s_cbranch_scc1 L_hend")
    Cm("finalizer")
    A("v_and_b32 v12, 1, v2")
    A("v_lshlrev_b32 v12, 13, v12")
    A("v_lshl_add_u32 v12, v3, 5, v12")
    A("s_lshl_b32 s38, s43, 1")
    A("v_add_u32 v12, s38, v12")
    for r in range(4):
        A(f"ds_read_b32 v{24+r}, v12 offset:{L_X1S + r*2048}")
    A("v_min_u32 v12, 10, v1")
    A("v_lshlrev_b32 v12, 2, v12")
    A("v_add_u32 v12, 96, v12")
    A("v_mov_b32 v13, 0x01010101")
    A("v_mov_b32 v14, 0x00010101")
    A("v_cmp_gt_u32 vcc, 10, v1")
    A("s_nop 1")
    A("v_cndmask_b32 v13, v14, v13, vcc")
    poll(12, "s[28:29]", 14, 13, sleep=False)
    stamp(8)
    A("v_lshrrev_b32 v12, 5, v1")
    A("v_lshlrev_b32 v12, 14, v12")
    A("v_and_b32 v13, 31, v1")
    A("v_lshl_add_u32 v12, v13, 4, v12")
    A("s_lshl_b32 s38, s42, 9")
    A(f"s_add_u32 s38, s38, {WS_FP}")
    A("v_add_u32 v12, s38, v12")
    for r in range(4):
        A(f"v_mov_b32 v{X+84+r}, 0")
    for n in range(22):
        if n == 21:
            set_exec(-1, 0)
        A(f"global_load_dwordx4 {vr(X+4*n,4)}, v12, s[30:31] sc1")
        if n < 21:
            A("v_add_u32 v12, 32768, v12")
    A("s_mov_b64 exec, -1")
    for n in range(1, 22):
        A(f"s_waitcnt vmcnt({21-n})")
        for r in range(4):
            A(f"v_add_f32 v{X+r}, v{X+r}, v{X+4*n+r}")
    for r in range(4):
        A(f"v_mov_b32 v{16+r}, v{X+r}")
    A("s_nop 1")
    for r in range(4):
        A(f"v_permlane32_swap_b32 v{16+r}, v{X+r}")
    A("s_nop 1")
    A("s_waitcnt lgkmcnt(0)")
    for r in range(4):
        A(f"v_add_f32 v{16+r}, v{16+r}, v{X+r}")
        bf16r(16 + r, 16 + r)
        A(f"v_lshlrev_b32 v{GB+r}, 16, v{GB+r}")
        A(f"v_mul_f32 v{16+r}, v{16+r}, v{GB+r}")
        bf16r(16 + r, 16 + r)
        A(f"v_add_f32 v{16+r}, v{16+r}, v{24+r}")
        A(f"v_cvt_pk_bf16_f32 v{16+r}, v{16+r}, v{16+r}")
    A("v_and_b32 v12, 1, v2")
    A("v_lshlrev_b32 v12, 12, v12")
    A("v_lshl_add_u32 v12, v3, 4, v12")
    A("v_add_u32 v12, s43, v12")
    set_exec(-1, 0)
    for r in range(4):
        A(f"global_store_short v12, v{16+r}, s[26:27] offset:{r*1024}")
    A("s_mov_b64 exec, -1")
    L("L_hend")
    stamp(9)
    dump_stamps(12)
    L("L_end")
    A("s_endpgm")

    body = "\n".join(g.o)
    tail = [
        '.section .rodata,"a"',
        ".p2align 6",
        f".amdhsa_kernel {K}",
        "  .amdhsa_next_free_vgpr 256",
        "  .amdhsa_next_free_sgpr 96",
        "  .amdhsa_accum_offset 256",
        "  .amdhsa_group_segment_fixed_size 0",
        "  .amdhsa_kernarg_size 112",
        "  .amdhsa_user_sgpr_count 2",
        "  .amdhsa_user_sgpr_kernarg_segment_ptr 1",
        "  .amdhsa_system_sgpr_workgroup_id_x 1",
        ".end_amdhsa_kernel",
    ]
    return "\n".join(hdr) + "\n" + body + "\n" + "\n".join(tail) + "\n"


if __name__ == "__main__":
    import argparse
    ap = argparse.ArgumentParser()
    ap.add_argument("-o", default="cdna_kernels/" + NAME + ".s")
    ap.add_argument("--inf", type=int, default=5)
    ap.add_argument("--lag", type=int, default=8)
    ap.add_argument("--c", type=int, default=40)
    ap.add_argument("--dbg", type=int, default=0)
    ap.add_argument("--hp", type=int, default=3)
    a = ap.parse_args()
    open(a.o, "w").write(gen(INF=a.inf, LAG=a.lag, C=a.c, dbg=a.dbg, HP=a.hp))
```
